```python
import torch

def _softmax(x, axis=-1):
    return torch.softmax(x, dim=axis)
def _gelu(x):
    return torch.nn.functional.gelu(x, approximate="tanh")
def _silu(x):
    return torch.nn.functional.silu(x)
def _sigmoid(x):
    return torch.sigmoid(x)
def _layernorm(x, axis=-1, eps=1e-5):
    m = x.mean(dim=axis, keepdim=True)
    v = x.var(dim=axis, keepdim=True, unbiased=False)
    return (x - m) / torch.sqrt(v + eps)
def _scatter_add(tgt, idx, src, axis=0):
    return tgt.clone().index_add_(axis, idx, src)
def _segment_sum(src, seg, n):
    out = torch.zeros((n,) + src.shape[1:], dtype=src.dtype)
    return out.index_add_(0, seg, src)
def _pad(x, pw):
    flat = tuple(v for pair in reversed(pw) for v in pair)
    return torch.nn.functional.pad(x, flat)

kernel_name = 'recurrent_scan__ssm_conv_s5__swiglu_ffn__prompt'

def setup_inputs():

    _w = (lambda a: (lambda t: t.to(torch.bfloat16) if t.is_floating_point() else t)(torch.as_tensor(a)))
    def _A_setup():
        B, S, D = 1, 2048, 512
        P = D
        Lambda_re = -0.5 * (lambda _x: torch.exp(torch.as_tensor(_x)))((lambda *s: torch.randn(*s, dtype=torch.bfloat16) * 0.2)(P))
        Lambda_im = (lambda *s: torch.randn(*s, dtype=torch.bfloat16) * 0.4)(P) * 1.0
        B_re = (lambda *s: torch.randn(*s, dtype=torch.bfloat16) * 0.2)(P, D) * (D ** -0.5)
        B_im = (lambda *s: torch.randn(*s, dtype=torch.bfloat16) * 0.2)(P, D) * (D ** -0.5)
        C_re = (lambda *s: torch.randn(*s, dtype=torch.bfloat16) * 0.2)(D, P) * (P ** -0.5)
        C_im = (lambda *s: torch.randn(*s, dtype=torch.bfloat16) * 0.2)(D, P) * (P ** -0.5)
        log_dt = (lambda *s: torch.randn(*s, dtype=torch.bfloat16) * 0.2)(P) * 0.3 - 2.0
        Dskip = (lambda *s: torch.randn(*s, dtype=torch.bfloat16) * 0.05)(D)
        return {
            "x": _w((lambda *s: torch.randn(*s, dtype=torch.bfloat16) * 0.05)(B, S, D)),
            "Lambda_re": _w(Lambda_re),
            "Lambda_im": _w(Lambda_im),
            "B_re": _w(B_re),
            "B_im": _w(B_im),
            "C_re": _w(C_re),
            "C_im": _w(C_im),
            "log_dt": _w(log_dt),
            "Dskip": _w(Dskip),
        }
    _A_in = _A_setup()

    def _B_setup():
        B, S, D, F = 1, 2048, 512, 1792
        return {
            "x": _w((lambda *s: torch.randn(*s, dtype=torch.bfloat16) * 0.05)(B, S, D)),
            "w_gate": _w((lambda *s: torch.randn(*s, dtype=torch.bfloat16) * 0.05)(D, F)),
            "w_up": _w((lambda *s: torch.randn(*s, dtype=torch.bfloat16) * 0.05)(D, F)),
            "w_down": _w((lambda *s: torch.randn(*s, dtype=torch.bfloat16) * 0.05)(F, D)),
        }
    _B_in = _B_setup()

    return {
        "A_x": _A_in["x"],
        "A_Lambda_re": _A_in["Lambda_re"],
        "A_Lambda_im": _A_in["Lambda_im"],
        "A_B_re": _A_in["B_re"],
        "A_B_im": _A_in["B_im"],
        "A_C_re": _A_in["C_re"],
        "A_C_im": _A_in["C_im"],
        "A_log_dt": _A_in["log_dt"],
        "A_Dskip": _A_in["Dskip"],
        "B_x": _B_in["x"],
        "B_w_gate": _B_in["w_gate"],
        "B_w_up": _B_in["w_up"],
        "B_w_down": _B_in["w_down"],
    }

def reference(A_x, A_Lambda_re, A_Lambda_im, A_B_re, A_B_im, A_C_re, A_C_im, A_log_dt, A_Dskip, B_x, B_w_gate, B_w_up, B_w_down):
    def _A_ref(x, Lambda_re, Lambda_im, B_re, B_im, C_re, C_im, log_dt, Dskip):
        Bsz, L, H = x.shape
        Lam = Lambda_re + 1j * Lambda_im
        Bmat = B_re + 1j * B_im
        Cmat = C_re + 1j * C_im
        dt = torch.exp(log_dt)
        Lam_bar = torch.exp(dt * Lam)
        B_bar = ((Lam_bar - 1.0) / Lam)[:, None] * Bmat
        Bu = torch.einsum("bld,pd->blp", x + 0j, B_bar)
        h = torch.zeros_like(Bu[:, 0, :])
        hs = []
        for t in range(L):
            h = Lam_bar[None, :] * h + Bu[:, t, :]
            hs.append(h)
        hseq = torch.stack(hs, 1)
        y = 2.0 * torch.einsum("blp,dp->bld", hseq, Cmat).real + x * Dskip[None, None, :]
        return y

    def _B_ref(x, w_gate, w_up, w_down):
        g = _silu(x @ w_gate)
        u = x @ w_up
        return (g * u) @ w_down

    x = A_x
    xn = _layernorm(x, axis=-1)
    s = _A_ref(xn, A_Lambda_re, A_Lambda_im, A_B_re, A_B_im, A_C_re, A_C_im, A_log_dt, A_Dskip)
    g = _silu(_B_ref(xn, B_w_gate, B_w_up, B_w_down))
    return x + s * g
```

```python
import re

def v(n, cnt=1):
    return f"v{n}" if cnt == 1 else f"v[{n}:{n+cnt-1}]"
def s(n, cnt=1):
    return f"s{n}" if cnt == 1 else f"s[{n}:{n+cnt-1}]"

_reg_re = re.compile(r"^(-?)(?:abs\()?([vsa])(?:(\d+)|\[(\d+):(\d+)\])\)?$")
def regs_of(opnd):
    if not isinstance(opnd, str): return []
    o = opnd.strip()
    if o in ("vcc",): return [("vcc", 0)]
    if o in ("vcc_lo",): return [("vcc", 0)]
    if o == "exec": return [("exec", 0)]
    if o == "m0": return [("m0", 0)]
    if o == "scc": return [("scc", 0)]
    m = _reg_re.match(o)
    if not m: return []
    k = m.group(2)
    if m.group(3) is not None: return [(k, int(m.group(3)))]
    return [(k, i) for i in range(int(m.group(4)), int(m.group(5)) + 1)]

TRANS = ("v_exp_f32", "v_log_f32", "v_rcp_f32", "v_rsq_f32", "v_sqrt_f32", "v_sin_f32", "v_cos_f32")

class Inst:
    __slots__ = ("op", "ops", "mods", "defs", "uses", "kind", "tag", "text", "comment", "extra")
    def __init__(self, op, ops, mods="", tag=None, comment=None):
        self.op, self.ops, self.mods, self.tag, self.comment = op, list(ops), mods, tag, comment
        self.extra = None
        self.classify()
    def classify(self):
        op, ops, mods = self.op, self.ops, self.mods
        R = [regs_of(o) for o in ops]
        flat = lambda xs: [r for x in xs for r in x]
        defs, uses, kind = [], [], None
        if op in ("label", "comment", "raw"):
            kind = op
        elif op.startswith("v_mfma"):
            kind = "mfma"; defs = R[0]; uses = flat(R[1:])
        elif op.startswith("v_cmp"):
            kind = "valu"; defs = R[0]; uses = flat(R[1:])
            if op.startswith("v_cmpx"): defs = defs + [("exec", 0)]
        elif op.startswith("v_permlane") and "swap" in op:
            kind = "valu"; defs = flat(R); uses = flat(R)
        elif op in ("v_readfirstlane_b32", "v_readlane_b32"):
            kind = "valu"; defs = R[0]; uses = flat(R[1:])
        elif op == "v_writelane_b32":
            kind = "valu"; defs = R[0]; uses = flat(R)
        elif op.startswith(("v_add_co", "v_sub_co", "v_addc_co", "v_subb_co", "v_subrev_co")):
            kind = "valu"; defs = R[0] + R[1]; uses = flat(R[2:])
        elif op.startswith("v_"):
            kind = "valu"; defs = R[0]; uses = flat(R[1:])
            if op.startswith(("v_fmac", "v_dot2c", "v_mac")) or "dpp" in op or "sdwa" in op or "row_" in mods or "quad_perm" in mods:
                uses = uses + R[0]
            if op.startswith("v_cndmask") and len(ops) == 3: uses = uses + [("vcc", 0)]
        elif op.startswith("ds_read") or op.startswith("ds_bpermute") or op.startswith("ds_swizzle"):
            kind = "ds_load"; defs = R[0]; uses = flat(R[1:])
        elif op.startswith("ds_write"):
            kind = "ds_store"; uses = flat(R)
        elif op.startswith("buffer_load") or op.startswith("global_load"):
            if " lds" in " " + mods or "_lds_" in op:
                kind = "vm_dma"; uses = flat(R) + [("m0", 0)]
            else:
                kind = "vm_load"; defs = R[0]; uses = flat(R[1:])
        elif op.startswith(("buffer_store", "global_store")):
            kind = "vm_store"; uses = flat(R)
        elif op.startswith(("global_atomic", "buffer_atomic")):
            kind = "vm_store"; uses = flat(R)
        elif op in ("buffer_inv", "buffer_wbl2"):
            kind = "vm_store"
        elif op.startswith("s_load") or op.startswith("s_memtime") or op.startswith("s_memrealtime"):
            kind = "smem"; defs = R[0]; uses = flat(R[1:])
        elif op in ("s_waitcnt", "s_barrier", "s_nop", "s_sleep", "s_setprio", "s_endpgm"):
            kind = "ctl"
        elif op.startswith("s_cbranch") or op == "s_branch":
            kind = "branch"
            if "scc" in op: uses = [("scc", 0)]
            if "vcc" in op: uses = [("vcc", 0)]
            if "exec" in op: uses = [("exec", 0)]
        elif op.startswith(("s_cmp", "s_bitcmp")):
            kind = "salu"; defs = [("scc", 0)]; uses = flat(R)
        elif op.startswith("s_"):
            kind = "salu"; defs = list(R[0]); uses = flat(R[1:])
            if op.startswith(("s_add_", "s_sub_", "s_addc", "s_subb", "s_lshl", "s_lshr", "s_and_", "s_or_", "s_xor_", "s_andn2", "s_ashr", "s_min", "s_max", "s_bfe", "s_mul_hi")) :
                defs = defs + [("scc", 0)]
            if op.startswith(("s_addc", "s_subb", "s_cselect")): uses = uses + [("scc", 0)]
            if "saveexec" in op: defs = defs + [("exec", 0), ("scc", 0)]; uses = uses + [("exec", 0)]
        else:
            raise ValueError("unknown op " + op)
        self.defs, self.uses, self.kind = defs, uses, kind
    def render(self):
        if self.kind == "label": return f"{self.ops[0]}:"
        if self.kind == "comment": return f"; {self.ops[0]}"
        if self.kind == "raw": return self.ops[0]
        t = self.op
        if self.ops: t += " " + ", ".join(str(o) for o in self.ops)
        if self.mods: t += " " + self.mods
        if self.comment: t += "  ; " + self.comment
        return "    " + t

class Stream:
    def __init__(self): self.l = []
    def e(self, op, *ops, mods="", tag=None, comment=None):
        i = Inst(op, ops, mods, tag, comment); self.l.append(i); return i
    def label(self, name): self.l.append(Inst("label", [name]))
    def c(self, text): self.l.append(Inst("comment", [text]))
    def raw(self, text): self.l.append(Inst("raw", [text]))
    def wait_vm(self, tag):
        i = Inst("comment", [f"wait_vm {tag}"]); i.kind = "wait_vm"; i.tag = tag; self.l.append(i)
    def wait_lgkm(self, tag):
        i = Inst("comment", [f"wait_lgkm {tag}"]); i.kind = "wait_lgkm"; i.tag = tag; self.l.append(i)
    def drain(self, vm=True, lgkm=True):
        i = Inst("comment", ["drain"]); i.kind = "drain"; i.extra = (vm, lgkm); self.l.append(i)
    def reset(self):
        i = Inst("comment", ["reset"]); i.kind = "reset"; self.l.append(i)
    def extend(self, other): self.l.extend(other.l if isinstance(other, Stream) else other)
    def __len__(self): return len(self.l)

def mfma_passes(op):
    return 8 if "32x32" in op else 4

class State:
    def __init__(self):
        self.vm = []
        self.lg = []
        self.smem = False
        self.smem_defs = set()
        self.hist = []
        self.clock = 0
    def copy(self):
        n = State(); n.vm = list(self.vm); n.lg = list(self.lg); n.smem = self.smem; n.smem_defs = set(self.smem_defs)
        n.hist = list(self.hist); n.clock = self.clock; return n

def _need_states(prev, cur):
    need = 0
    pd = set(prev.defs); cu = set(cur.uses); cd = set(cur.defs)
    pv = {r for r in pd if r[0] in ("v", "a")}
    if prev.kind == "mfma":
        p = mfma_passes(prev.op)
        if cur.kind == "mfma":
            D = regs_of(prev.ops[0]); C = regs_of(cur.ops[3]); AB = regs_of(cur.ops[1]) + regs_of(cur.ops[2])
            if set(D) & set(AB): need = max(need, 12 if p == 8 else 8)
            if set(D) & set(C):
                if D == C and mfma_passes(cur.op) == p: pass
                else: need = max(need, 10 if p == 8 else 6)
            Dc = regs_of(cur.ops[0])
            if set(D) & set(Dc) and not (set(D) & set(C)): need = max(need, 10 if p == 8 else 6)
        elif cur.kind in ("valu", "ds_load", "ds_store", "vm_load", "vm_store", "vm_dma"):
            if pv & (cu | cd): need = max(need, 12 if p == 8 else 8)
            if cur.kind == "valu":
                C = set(regs_of(prev.ops[3]))
                if C & cd: need = max(need, 7 if p == 8 else 3)
    if prev.kind == "valu":
        if cur.kind == "mfma" and pv & cu: need = max(need, 2)
        if cur.kind == "valu":
            if prev.op in TRANS and cur.op not in TRANS and pv & cu: need = max(need, 1)
            if prev.op in TRANS and cur.op in TRANS and pv & cu: need = max(need, 1)
            isdpp = "dpp" in cur.op or "row_" in cur.mods or "quad_perm" in cur.mods
            if isdpp and pv & cu: need = max(need, 2)
            if cur.op.startswith("v_permlane") and pv & cu: need = max(need, 2)
            if cur.op in ("v_readfirstlane_b32", "v_readlane_b32") and pv & cu: need = max(need, 1)
            if "sdwa" in prev.op and pv & (cu | cd): need = max(need, 1)
        ps = {r for r in pd if r[0] in ("s", "vcc")}
        if ps:
            if cur.kind == "valu" and ps & cu:
                need = max(need, 4 if cur.op in ("v_readlane_b32", "v_writelane_b32") else 2)
            if cur.kind in ("vm_load", "vm_store", "vm_dma") and ps & cu: need = max(need, 5)
            if cur.kind in ("salu", "branch", "smem") and ps & cu: need = max(need, 4)
        if ("exec", 0) in pd:
            if cur.kind == "valu": need = max(need, 5)
            if cur.kind == "mfma": need = max(need, 4)
    if prev.kind == "salu":
        if ("m0", 0) in pd and cur.kind == "vm_dma": need = max(need, 1)
        if ("exec", 0) in pd and cur.kind == "valu" and ("dpp" in cur.op or "row_" in cur.mods): need = max(need, 1)
    if prev.kind == "vm_store" and ("x4" in prev.op or "x3" in prev.op):
        data = set(r for r in prev.uses if r[0] == "v")
        if cur.kind == "valu" and data & cd: need = max(need, 2)
        elif cur.kind in ("ds_load", "vm_load", "mfma") and data & cd: need = max(need, 1)
    if prev.kind == "ds_store" and ("b128" in prev.op):
        pass
    return need

def finalize(stream, state=None, out=None):
    st = state if state is not None else State()
    lines = out if out is not None else []
    def issue(inst):
        lines.append(inst.render())
        if inst.kind in ("label", "comment", "raw"): return
        if inst.op == "s_nop": st.clock += int(inst.ops[0]) + 1
        else: st.clock += 1
        if inst.kind in ("valu", "mfma", "salu", "vm_store"):
            st.hist.append((inst, st.clock))
        if len(st.hist) > 40: st.hist = st.hist[-32:]
    def do_wait(vm=None, lg=None):
        parts = []
        if vm is not None:
            n = min(vm, 63); parts.append(f"vmcnt({n})")
            st.vm = st.vm[len(st.vm) - n:] if n else []
        if lg is not None:
            n = min(lg, 15); parts.append(f"lgkmcnt({n})")
            st.lg = st.lg[len(st.lg) - n:] if n else []
            if n == 0: st.smem = False; st.smem_defs = set()
        if parts: issue(Inst("s_waitcnt", [" ".join(parts)]))
    for inst in stream.l:
        k = inst.kind
        if k in ("label", "comment", "raw"):
            lines.append(inst.render()); continue
        if k == "reset":
            st.vm, st.lg, st.smem, st.smem_defs = [], [], False, set(); st.hist = []; continue
        if k == "drain":
            vm, lg = inst.extra
            do_wait(0 if vm and st.vm else None, 0 if lg and (st.lg or st.smem) else None); continue
        if k == "wait_vm":
            idx = [n for n, e in enumerate(st.vm) if e["tag"] == inst.tag]
            if idx: do_wait(vm=len(st.vm) - 1 - idx[-1])
            continue
        if k == "wait_lgkm":
            idx = [n for n, e in enumerate(st.lg) if e["tag"] == inst.tag]
            if idx:
                if st.smem: do_wait(lg=0)
                else: do_wait(lg=len(st.lg) - 1 - idx[-1])
            continue
        touched = set(inst.uses) | set(inst.defs)
        wvm = wlg = None
        for n, e in enumerate(st.vm):
            if e["defs"] & touched: wvm = len(st.vm) - 1 - n
        for n, e in enumerate(st.lg):
            if e["defs"] & touched: wlg = len(st.lg) - 1 - n
        if st.smem and st.smem_defs & touched: wlg = 0
        if wlg is not None and st.smem: wlg = 0
        if wvm is not None or wlg is not None: do_wait(wvm, wlg)
        need = 0
        for prev, clk in st.hist:
            req = _need_states(prev, inst)
            if req:
                have = st.clock - clk
                need = max(need, req - have)
        while need > 0:
            n = min(need, 16); issue(Inst("s_nop", [n - 1])); need -= n
        issue(inst)
        if k in ("vm_load", "vm_store", "vm_dma"):
            st.vm.append({"tag": inst.tag, "defs": set(inst.defs)})
        elif k in ("ds_load", "ds_store"):
            st.lg.append({"tag": inst.tag, "defs": set(inst.defs)})
        elif k == "smem":
            st.smem = True; st.smem_defs |= set(inst.defs)
        elif inst.op == "s_waitcnt":
            t = inst.ops[0]
            m = re.search(r"vmcnt\((\d+)\)", t)
            if m: n = int(m.group(1)); st.vm = st.vm[max(0, len(st.vm) - n):] if n else []
            m = re.search(r"lgkmcnt\((\d+)\)", t)
            if m:
                n = int(m.group(1)); st.lg = st.lg[max(0, len(st.lg) - n):] if n else []
                if n == 0: st.smem = False; st.smem_defs = set()
    return lines, st

def interleave(main, side, weights=None, every=1, per=1, start=0):
    out = Stream(); si = 0; nm = 0
    for inst in main.l:
        out.l.append(inst)
        if inst.kind == "mfma":
            nm += 1
            if nm > start and (nm - start) % every == 0:
                cnt = 0
                while si < len(side.l) and cnt < per:
                    x = side.l[si]; out.l.append(x); si += 1
                    if x.kind not in ("comment", "label", "raw", "wait_vm", "wait_lgkm"): cnt += 1
    out.l.extend(side.l[si:])
    return out

def kernel_header(name):
    return [".text", f".globl {name}", ".p2align 8", f".type {name},@function", f"{name}:"]
def kernel_descriptor(name, vgpr=256, sgpr=102, accum=256):
    return ['.section .rodata,"a"', ".p2align 6", f".amdhsa_kernel {name}", f"  .amdhsa_next_free_vgpr {vgpr}", f"  .amdhsa_next_free_sgpr {sgpr}",
            f"  .amdhsa_accum_offset {accum}", "  .amdhsa_group_segment_fixed_size 0", "  .amdhsa_kernarg_size 128", "  .amdhsa_user_sgpr_count 2",
            "  .amdhsa_user_sgpr_kernarg_segment_ptr 1", "  .amdhsa_system_sgpr_workgroup_id_x 1", "  .amdhsa_float_denorm_mode_32 3", ".end_amdhsa_kernel"]
```

```python
import sys, struct, math, os
sys.path.insert(0, os.path.dirname(os.path.abspath(__file__)))
from asmlib import *

NAME = "recurrent_scan__ssm_conv_s5__swiglu_ffn__prompt_kernel"
def f32(x): return "0x%08x" % struct.unpack("<I", struct.pack("<f", x))[0]
LOG2E = 1.4426950408889634

WS_FLAG = 0x0
WS_STAT = 0x8000
WS_CSP  = 0x10000
WS_AGG  = 0x90000
WS_PROF = 0xA0000
WS_AFR  = 0x100000
KSTEPS = 176
RG = KSTEPS * 1024
WS_SIZE = 0x10000000
OOB = 0x7FF00000
SLOT = 16384; NSLOT = 9
MISC = SLOT * NSLOT
L_CT = MISC
L_MM = MISC + 2560
L_RS = MISC + 3072
L_PT = MISC + 3584
L_XW = MISC + 4608
L_HW = MISC + 5632
L_TB = MISC + 5888
LDS_TOTAL = 163840
P_X, P_LRE, P_LIM, P_BRE, P_BIM, P_CRE, P_CIM, P_LDT, P_DSK, P_BX, P_WG, P_WU, P_WD, P_OUT, P_DBG, P_WS = [8 + 2 * n for n in range(16)]
R_X, R_WG, R_WU, R_BRE, R_BIM, R_WS, R_WD, R_CRE, R_CIM, R_OUT, R_DBG, R_TMP = [40 + 4 * n for n in range(12)]
sI, sJ, sRB, sCB, sR, sC, sI2 = 88, 89, 90, 91, 92, 93, 94
sT0, sT1, sT2, sT3, sT4 = 3, 4, 5, 6, 7
sSO, sSO2, sCNT = 95, 96, 97
sMA, sMB = 98, 100
vLANE = 0
vST = 1
vAW = [2, 3]; vAWC = [4, 5]
vAX = 6; vAXC = [7, 8, 9, 10]
vC1, vR2 = 11, 12
vT = list(range(13, 20)) + [120, 121, 122, 123]
vD = list(range(24, 32))
vW = 32
vACC3, vACCS, vACC1 = 48, 80, 96
vX = 128

class Opt:
    stop = None
    prof = False
    spin = 400000

def srd(S, dst, ptr, size):
    S.e("s_mov_b32", s(dst), s(ptr)); S.e("s_mov_b32", s(dst + 1), s(ptr + 1))
    S.e("s_mov_b32", s(dst + 2), hex(size)); S.e("s_mov_b32", s(dst + 3), "0x20000")

def stamp(S, idx, o, who):
    if not o.prof: return
    S.drain(vm=False, lgkm=True)
    S.e("s_memrealtime", "s[0:1]")
    S.drain(vm=False, lgkm=True)
    S.e("v_mov_b32", "v16", "s0"); S.e("v_mov_b32", "v17", "s1")
    S.e("buffer_store_dwordx2", "v[16:17]", "off", s(R_WS, 4), "s2", mods=f"offset:{idx*8}")

def allreduce64(S, x, t0, t1):
    for n in (8, 4, 2, 1):
        S.e("v_add_f32_dpp", v(x), v(x), v(x), mods=f"row_ror:{n} row_mask:0xf bank_mask:0xf")
    S.e("v_mov_b32", v(t0), v(x))
    S.e("v_permlane16_swap_b32", v(x), v(t0)); S.e("v_add_f32", v(x), v(x), v(t0))
    S.e("v_mov_b32", v(t0), v(x))
    S.e("v_permlane32_swap_b32", v(x), v(t0)); S.e("v_add_f32", v(x), v(x), v(t0))

def unpack(S, dlo, dhi, src):
    S.e("v_lshlrev_b32", v(dlo), 16, v(src)); S.e("v_and_b32", v(dhi), "0xffff0000", v(src))

def common_prologue(o):
    S = Stream(); e = S.e
    e("s_cmp_ge_u32", "s2", 256); e("s_cbranch_scc1", "L_end")
    e("s_load_dwordx16", "s[8:23]", "s[0:1]", 0); e("s_load_dwordx16", "s[24:39]", "s[0:1]", 64)
    e("s_and_b32", s(sT0), "s2", 7); e("s_lshr_b32", s(sT1), "s2", 3)
    e("s_and_b32", s(sT2), s(sT0), 1); e("s_lshr_b32", s(sT3), s(sT0), 1)
    e("s_and_b32", s(sT4), s(sT1), 7); e("s_lshr_b32", s(sT1), s(sT1), 3)
    e("s_lshl_b32", s(sI), s(sT2), 3); e("s_add_u32", s(sI), s(sI), s(sT4))
    e("s_lshl_b32", s(sJ), s(sT3), 2); e("s_add_u32", s(sJ), s(sJ), s(sT1))
    e("s_lshl_b32", s(sRB), s(sT3), 3); e("s_add_u32", s(sRB), s(sRB), s(sT4))
    e("s_lshl_b32", s(sCB), s(sT2), 2); e("s_add_u32", s(sCB), s(sCB), s(sT1))
    e("s_lshr_b32", s(sI2), s(sRB), 1)
    e("v_lshrrev_b32", "v1", 6, "v0"); e("v_readfirstlane_b32", s(sT0), "v1")
    e("v_and_b32", v(vLANE), 63, "v0")
    e("s_and_b32", s(sR), s(sT0), 3); e("s_lshr_b32", s(sC), s(sT0), 2)
    L = v(vLANE); t = vT
    e("s_mul_i32", s(sT1), s(sR), hex(RG)); e("v_lshlrev_b32", v(vST), 4, L); e("v_add_u32", v(vST), s(sT1), v(vST))
    e("v_and_b32", v(t[0]), 31, L); e("v_lshrrev_b32", v(t[1]), 5, L)
    e("v_bfe_u32", v(t[2]), L, 1, 3)
    e("v_xor_b32", v(t[2]), v(t[2]), v(t[1])); e("v_lshlrev_b32", v(t[2]), 4, v(t[2]))
    e("s_lshl_b32", s(sT1), s(sR), 12)
    e("v_lshl_add_u32", v(vAX), v(t[0]), 7, v(t[2])); e("v_add_u32", v(vAX), s(sT1), v(vAX))
    e("v_bfe_u32", v(t[2]), L, 4, 1)
    e("v_bfe_u32", v(t[3]), L, 2, 2)
    e("v_bfe_u32", v(t[4]), L, 3, 1)
    e("v_lshl_add_u32", v(t[4]), v(t[2]), 1, v(t[4]))
    e("v_lshlrev_b32", v(t[5]), 11, v(t[1])); e("v_lshl_add_u32", v(t[5]), v(t[2]), 10, v(t[5])); e("v_lshl_add_u32", v(t[5]), v(t[3]), 7, v(t[5]))
    e("v_and_b32", v(t[6]), 1, L); e("v_lshl_add_u32", v(t[5]), v(t[6]), 4, v(t[5]))
    e("v_bfe_u32", v(t[6]), L, 1, 1); e("v_lshl_add_u32", v(t[5]), v(t[6]), 3, v(t[5]))
    e("s_lshl_b32", s(sT1), s(sC), 1)
    e("v_xor_b32", v(t[6]), s(sT1), v(t[4])); e("v_lshl_add_u32", v(vAW[0]), v(t[6]), 5, v(t[5]))
    e("v_xor_b32", v(vAW[1]), 32, v(vAW[0]))
    S.drain()
    srd(S, R_WS, P_WS, WS_SIZE)
    if o.prof:
        e("s_lshl_b32", s(sT1), s(sI), 4); e("s_add_u32", s(sT1), s(sT1), s(sJ)); e("s_lshl_b32", s(sT1), s(sT1), 9); e("s_lshl_b32", s(sT2), s(sC), 8)
        e("s_add_u32", s(sT1), s(sT1), s(sT2)); e("s_add_u32", s(sT1), s(sT1), hex(WS_PROF))
        e("s_cmp_eq_u32", s(sR), 0); e("s_cselect_b32", "s2", s(sT1), hex(OOB))
    e("s_cmp_eq_u32", s(sC), 1); e("s_cbranch_scc1", "L_P1")
    return S

class Slot:
    def __init__(self, kind, arg, step, gate=None): self.kind, self.arg, self.step, self.gate = kind, arg, step, gate; self.pos = None; self.tag = None

def build_slots(heavy):
    sl = []
    for q in range(8):
        sl.append(Slot("x", q, q)); sl.append(Slot("w", (0, q), q))
    sl.append(Slot("s", (0, 0), 8)); sl.append(Slot("s", (1, 0), 8)); sl.append(Slot("s", (0, 1), 9)); sl.append(Slot("s", (1, 1), 9))
    st = 10
    if heavy:
        for q in range(8): sl.append(Slot("w", (1, q), st + q // 2))
        st += 4
    st += 1
    p2 = st
    for sg in range(22):
        sl.append(Slot("b", sg, st + sg)); sl.append(Slot("a", sg, st + sg, gate="p2"))
    return sl, p2

def dma_slot(S, sl):
    e = S.e; base = sl.pos * SLOT; tag = sl.tag
    if sl.kind == "x":
        e("s_mov_b32", s(sSO), 128 * sl.arg)
        for n in range(4):
            if n == 0: e("s_add_u32", "m0", "s86", hex(base))
            else: e("s_add_u32", "m0", "m0", 1024)
            e("buffer_load_dwordx4", v(vD[n]), s(R_X, 4), s(sSO), mods="offen lds", tag=tag)
    elif sl.kind == "w":
        ub, q = sl.arg
        for n in range(2):
            e("s_add_u32", s(sSO), "s87", hex(64 * q * 3584 + n * 28672 + ub * 2048))
            e("s_add_u32", "m0", "s86", hex(base + n * 2048))
            e("buffer_load_dwordx4", v(vD[4]), s(R_WG, 4), s(sSO), mods="offen lds", tag=tag)
            e("s_add_u32", "m0", "m0", 1024)
            e("buffer_load_dwordx4", v(vD[5]), s(R_WU, 4), s(sSO), mods="offen lds", tag=tag)
    elif sl.kind == "s":
        c, hk = sl.arg
        e("s_add_u32", s(sSO), "s85", hex(c * 16384 + 512 * hk))
        for n in range(2):
            e("s_add_u32", "m0", "s84", hex(base + n * 1024))
            e("buffer_load_dwordx4", v(vD[6 + n]), s(R_BRE, 4), s(sSO), mods="offen lds", tag=tag)
            e("s_add_u32", "m0", "m0", 8192)
            e("buffer_load_dwordx4", v(vD[6 + n]), s(R_BIM, 4), s(sSO), mods="offen lds", tag=tag)
    elif sl.kind == "a":
        sg = sl.arg
        e("s_add_u32", s(sSO), "s83", hex(8 * sg * 1024))
        e("s_add_u32", "m0", "s86", hex(base))
        for n in range(4):
            e("buffer_load_dwordx4", v(vD[0]), s(R_WS, 4), s(sSO), mods=f"offen offset:{n*1024} sc1 lds", tag=tag)
    elif sl.kind == "b":
        sg = sl.arg
        if sg < 8 or sg >= 16:
            k0 = 128 * sg if sg < 8 else 1024 + 128 * (sg - 16)
            for n in range(4):
                e("s_mov_b32", s(sSO), hex(k0 * 1024 + n * 8192))
                if n == 0: e("s_add_u32", "m0", "s86", hex(base))
                else: e("s_add_u32", "m0", "m0", 1024)
                e("buffer_load_dwordx4", v(vD[1]), s(R_WD, 4), s(sSO), mods="offen lds", tag=tag)
        else:
            e("s_mov_b32", s(sSO), 128 * (sg - 8))
            for n in range(2):
                e("s_add_u32", "m0", "s84", hex(base + n * 1024))
                e("buffer_load_dwordx4", v(vD[2 + n]), s(R_CRE, 4), s(sSO), mods="offen lds", tag=tag)
                e("s_add_u32", "m0", "m0", 8192)
                e("buffer_load_dwordx4", v(vD[2 + n]), s(R_CIM, 4), s(sSO), mods="offen lds", tag=tag)

def p1_prologue(o):
    S = Stream(); e = S.e; L = v(vLANE); t = vT
    srd(S, R_X, P_X, 2048 * 1024); srd(S, R_WG, P_WG, 512 * 3584); srd(S, R_WU, P_WU, 512 * 3584)
    e("s_lshl_b32", "s86", s(sR), 12); e("s_lshl_b32", "s84", s(sR), 11)
    e("s_lshl_b32", "s87", s(sJ), 7); e("s_lshl_b32", "s85", s(sJ), 15)
    e("v_bfe_u32", v(t[0]), L, 5, 1); e("v_bfe_u32", v(t[1]), L, 3, 2)
    e("v_lshl_add_u32", v(t[0]), v(t[0]), 4, v(t[1]))
    e("s_lshl_b32", s(sT1), s(sI), 7); e("s_lshl_b32", s(sT2), s(sR), 5); e("s_add_u32", s(sT1), s(sT1), s(sT2))
    e("v_add_u32", v(t[0]), s(sT1), v(t[0])); e("v_lshlrev_b32", v(t[0]), 10, v(t[0]))
    e("v_and_b32", v(t[1]), 7, L); e("v_lshrrev_b32", v(t[2]), 4, L); e("v_xor_b32", v(t[1]), v(t[1]), v(t[2]))
    e("v_lshl_add_u32", v(vD[0]), v(t[1]), 4, v(t[0]))
    e("v_xor_b32", v(vD[1]), 64, v(vD[0])); e("v_add_u32", v(vD[1]), 4096, v(vD[1]))
    e("v_add_u32", v(vD[2]), 8192, v(vD[0])); e("v_add_u32", v(vD[3]), 8192, v(vD[1]))
    e("v_lshrrev_b32", v(t[0]), 3, L); e("s_lshl_b32", s(sT1), s(sR), 4); e("v_add_u32", v(t[0]), s(sT1), v(t[0]))
    e("s_mov_b32", s(sT2), 3584); e("v_mul_lo_u32", v(t[0]), s(sT2), v(t[0]))
    e("v_bfe_u32", v(t[1]), L, 4, 1); e("v_lshlrev_b32", v(t[1]), 1, v(t[1])); e("v_and_b32", v(t[2]), 7, L); e("v_xor_b32", v(t[1]), v(t[1]), v(t[2]))
    e("v_lshl_add_u32", v(vD[4]), v(t[1]), 4, v(t[0])); e("v_xor_b32", v(vD[5]), 64, v(vD[4]))
    for n in range(2):
        e("v_lshrrev_b32", v(t[0]), 5, L); e("s_lshl_b32", s(sT1), s(sR), 2); e("s_add_u32", s(sT1), s(sT1), 2 * n); e("v_add_u32", v(t[0]), s(sT1), v(t[0]))
        e("v_and_b32", v(t[1]), 31, L); e("v_xor_b32", v(t[1]), v(t[1]), v(t[0])); e("v_lshlrev_b32", v(t[1]), 4, v(t[1]))
        e("v_lshl_add_u32", v(vD[6 + n]), v(t[0]), 10, v(t[1]))
    srd(S, R_BRE, P_BRE, 512 * 1024); srd(S, R_BIM, P_BIM, 512 * 1024)
    srd(S, R_WD, P_WD, 1792 * 1024); srd(S, R_CRE, P_CRE, 512 * 1024); srd(S, R_CIM, P_CIM, 512 * 1024)
    e("s_mul_i32", "s83", s(sRB), hex(2 * RG)); e("s_add_u32", "s83", "s83", hex(WS_AFR))
    return S

def p1_phase2_voffsets(S):
    e = S.e; L = v(vLANE); t = vT
    e("s_lshr_b32", s(sT1), s(sR), 1); e("s_mul_i32", s(sT1), s(sT1), hex(RG)); e("s_and_b32", s(sT2), s(sR), 1); e("s_lshl_b32", s(sT2), s(sT2), 12)
    e("s_add_u32", s(sT1), s(sT1), s(sT2))
    e("v_lshlrev_b32", v(vD[0]), 4, L); e("v_add_u32", v(vD[0]), s(sT1), v(vD[0]))
    e("v_lshrrev_b32", v(t[0]), 3, L); e("s_lshl_b32", s(sT1), s(sR), 5); e("v_add_u32", v(t[0]), s(sT1), v(t[0])); e("v_lshlrev_b32", v(t[0]), 10, v(t[0]))
    e("v_bfe_u32", v(t[1]), L, 4, 1); e("v_lshlrev_b32", v(t[1]), 2, v(t[1])); e("v_and_b32", v(t[2]), 7, L); e("v_xor_b32", v(t[1]), v(t[1]), v(t[2]))
    e("v_lshl_add_u32", v(vD[1]), v(t[1]), 4, v(t[0])); e("s_lshl_b32", s(sT1), s(sCB), 7); e("v_add_u32", v(vD[1]), s(sT1), v(vD[1]))
    for n in range(2):
        e("v_lshrrev_b32", v(t[0]), 3, L); e("s_lshl_b32", s(sT1), s(sR), 4); e("s_lshl_b32", s(sT2), s(sCB), 6); e("s_add_u32", s(sT1), s(sT1), s(sT2))
        e("s_add_u32", s(sT1), s(sT1), 8 * n); e("v_add_u32", v(t[0]), s(sT1), v(t[0])); e("v_lshlrev_b32", v(t[0]), 10, v(t[0]))
        e("v_lshrrev_b32", v(t[1]), 4, L)
        if n: e("v_xor_b32", v(t[1]), 4, v(t[1]))
        e("v_and_b32", v(t[2]), 7, L); e("v_xor_b32", v(t[1]), v(t[1]), v(t[2]))
        e("v_lshl_add_u32", v(vD[2 + n]), v(t[1]), 4, v(t[0]))

def flag_addr(S, dst, tmp):
    e = S.e
    e("s_lshl_b32", s(sT1), s(sI), 4); e("s_add_u32", s(sT1), s(sT1), s(sJ)); e("s_lshl_b32", s(sT1), s(sT1), 7)
    e("s_cmp_eq_u32", s(sR), 0); e("s_cselect_b32", s(sT1), s(sT1), hex(OOB))
    e("v_mov_b32", v(dst), s(sT1)); e("v_mov_b32", v(tmp), hex(OOB))
    e("v_cmp_eq_u32", "vcc", 0, v(vLANE)); e("v_cndmask_b32", v(dst), v(tmp), v(dst), "vcc")

vFLAG = 24
vPOLL = 25
vPOLL2 = 26

def set_flag(S, val):
    S.e("v_mov_b32", v(vT[6]), val)
    S.e("buffer_store_dword", v(vT[6]), v(vFLAG), s(R_WS, 4), 0, mods="offen sc0 sc1", tag="flag")

_lbl = [0]
def poll(S, o, addr, val, mask_lanes=None, srdreg=R_WS, byte=False):
    e = S.e; _lbl[0] += 1; n = _lbl[0]
    S.drain()
    e("s_mov_b32", s(sCNT), o.spin)
    S.label(f"L_poll{n}")
    S.raw(f"    buffer_load_{'ubyte' if byte else 'dword'} v{vT[6]}, v{addr}, s[{srdreg}:{srdreg+3}], 0 offen sc0 sc1")
    S.raw("    s_waitcnt vmcnt(0)")
    S.raw(f"    v_cmp_le_u32 vcc, {val}, v{vT[6]}")
    S.raw("    s_nop 4")
    S.raw("    s_cmp_eq_u64 vcc, exec")
    S.raw(f"    s_cbranch_scc1 L_polld{n}")
    S.raw("    s_sleep 2")
    S.raw(f"    s_sub_u32 s{sCNT}, s{sCNT}, 1")
    S.raw(f"    s_cmp_lg_u32 s{sCNT}, 0")
    S.raw(f"    s_cbranch_scc1 L_poll{n}")
    S.label(f"L_polld{n}")
    S.reset()

def p0_prologue(o):
    S = Stream(); e = S.e; L = v(vLANE); t = vT
    srd(S, R_X, P_X, 2048 * 1024); srd(S, R_DBG, P_DBG, 256)
    flag_addr(S, vFLAG, t[0])
    e("v_mov_b32", v(t[0]), 0)
    e("buffer_store_dword", v(t[0]), v(vFLAG), s(R_WS, 4), 0, mods="offen sc0 sc1", tag="z")
    e("s_and_b32", s(sT1), s(sR), 1); e("s_cmp_eq_u32", s(sT1), 0)
    e("s_cselect_b32", s(R_TMP), s(P_WG), s(P_WU)); e("s_cselect_b32", s(R_TMP + 1), s(P_WG + 1), s(P_WU + 1))
    e("s_mov_b32", s(R_TMP + 2), hex(512 * 3584)); e("s_mov_b32", s(R_TMP + 3), "0x20000")
    e("s_lshl_b32", s(sT1), s(sJ), 7)
    e("s_cmp_ge_u32", s(sR), 2); e("s_cselect_b32", s(sT2), 2048, 0); e("s_cmp_lt_u32", s(sJ), 12); e("s_cselect_b32", s(sT2), s(sT2), 0)
    e("s_add_u32", s(sT1), s(sT1), s(sT2))
    e("s_mul_i32", s(sT2), s(sI), hex(32 * 3584)); e("s_add_u32", s(sSO), s(sT1), s(sT2))
    e("v_lshrrev_b32", v(t[0]), 3, L); e("s_mov_b32", s(sT2), 3584); e("v_mul_lo_u32", v(t[0]), s(sT2), v(t[0]))
    e("v_and_b32", v(t[1]), 7, L); e("v_lshl_add_u32", v(t[0]), v(t[1]), 4, v(t[0]))
    for n in range(4):
        e("buffer_load_dwordx4", v(48 + 4 * n, 4), v(t[0]), s(R_TMP, 4), s(sSO), mods="offen")
        if n < 3: e("s_add_u32", s(sSO), s(sSO), 28672)
    e("s_lshl_b32", s(sT1), s(sI), 2); e("s_add_u32", s(sT1), s(sT1), s(sR))
    e("s_bitcmp1_b32", s(sT1), 4)
    e("s_cselect_b32", s(R_TMP), s(P_BIM), s(P_BRE)); e("s_cselect_b32", s(R_TMP + 1), s(P_BIM + 1), s(P_BRE + 1))
    e("s_mov_b32", s(R_TMP + 2), hex(512 * 1024))
    e("s_lshr_b32", s(sT2), s(sT1), 5); e("s_lshl_b32", s(sT2), s(sT2), 4); e("s_and_b32", s(sT1), s(sT1), 15); e("s_add_u32", s(sT1), s(sT1), s(sT2))
    e("s_lshl_b32", s(sT2), s(sJ), 5); e("s_add_u32", s(sT1), s(sT1), s(sT2)); e("s_lshl_b32", s(sSO2), s(sT1), 10)
    e("v_lshlrev_b32", v(t[1]), 4, L)
    e("buffer_load_dwordx4", v(64, 4), v(t[1]), s(R_TMP, 4), s(sSO2), mods="offen")
    e("s_lshl_b32", s(sT1), s(sI), 7); e("s_lshl_b32", s(sT2), s(sJ), 3); e("s_add_u32", s(sT1), s(sT1), s(sT2)); e("s_lshl_b32", s(sT2), s(sR), 1)
    e("s_add_u32", s(sT1), s(sT1), s(sT2)); e("s_lshl_b32", s(sSO), s(sT1), 10)
    e("buffer_load_dwordx4", v(68, 4), v(t[1]), s(R_X, 4), s(sSO), mods="offen")
    e("buffer_load_dwordx4", v(72, 4), v(t[1]), s(R_X, 4), s(sSO), mods="offen offset:1024")
    e("v_and_b32", v(t[2]), 31, L); e("s_lshl_b32", s(sT1), s(sJ), 5); e("v_add_u32", v(t[2]), s(sT1), v(t[2])); e("v_lshlrev_b32", v(t[2]), 1, v(t[2]))
    e("global_load_ushort", v(76), v(t[2]), s(P_LRE, 2)); e("global_load_ushort", v(77), v(t[2]), s(P_LIM, 2)); e("global_load_ushort", v(78), v(t[2]), s(P_LDT, 2))
    e("s_lshl_b32", s(sT1), s(sI), 4); e("s_add_u32", s(sT1), s(sT1), s(sJ)); e("s_cmp_eq_u32", s(sR), 0); e("s_cselect_b32", s(sT1), s(sT1), hex(OOB))
    e("v_mov_b32", v(t[3]), s(sT1)); e("v_mov_b32", v(t[4]), hex(OOB)); e("v_cmp_eq_u32", "vcc", 0, L); e("v_cndmask_b32", v(t[3]), v(t[4]), v(t[3]), "vcc")
    e("v_mov_b32", v(t[4]), 1)
    S.wait_vm("z")
    e("buffer_store_byte", v(t[4]), v(t[3]), s(R_DBG, 4), 0, mods="offen sc0 sc1", tag="conf")
    e("v_and_b32", v(t[5]), 15, L); e("v_bfe_u32", v(t[6]), L, 4, 1)
    e("s_lshl_b32", s(sT1), s(sI), 4); e("v_add_u32", v(t[7]), s(sT1), v(t[5]))
    e("v_lshlrev_b32", v(t[8]), 4, v(t[5])); e("v_add_u32", v(t[8]), s(sJ), v(t[8]))
    e("v_cmp_eq_u32", "vcc", 0, v(t[6])); e("v_cndmask_b32", v(t[7]), v(t[8]), v(t[7]), "vcc")
    e("v_mov_b32", v(27), v(t[7]))
    e("v_lshlrev_b32", v(vPOLL), 7, v(t[7]))
    e("s_lshl_b32", s(sT1), s(sI2), 4); e("v_add_u32", v(t[7]), s(sT1), v(t[5])); e("v_mov_b32", v(28), v(t[7])); e("v_lshlrev_b32", v(vPOLL2), 7, v(t[7]))
    u = list(range(96, 104))
    for q in range(4):
        for n in range(4):
            if n == 0:
                unpack(S, 80 + 2 * q, 81 + 2 * q, 48 + q)
            else:
                unpack(S, u[0], u[1], 48 + 4 * n + q)
                e("v_add_f32", v(80 + 2 * q), v(80 + 2 * q), v(u[0])); e("v_add_f32", v(81 + 2 * q), v(81 + 2 * q), v(u[1]))
    for a in range(4):
        e("v_permlane32_swap_b32", v(80 + a), v(84 + a)); e("v_add_f32", v(80 + a), v(80 + a), v(84 + a))
    for a in range(2):
        e("v_permlane16_swap_b32", v(80 + a), v(82 + a)); e("v_add_f32", v(80 + a), v(80 + a), v(82 + a))
    for a in range(2):
        e("v_add_f32_dpp", v(80 + a), v(80 + a), v(80 + a), mods="row_ror:8 row_mask:0xf bank_mask:0xf")
    e("s_lshl_b32", s(sT1), s(sJ), 15); e("s_lshl_b32", s(sT2), s(sI), 11); e("s_add_u32", s(sT1), s(sT1), s(sT2)); e("s_add_u32", "s86", s(sT1), hex(WS_CSP))
    e("s_lshl_b32", s(sT2), s(sR), 8); e("s_add_u32", s(sSO), "s86", s(sT2))
    e("v_and_b32", v(t[0]), 7, L); e("v_lshlrev_b32", v(t[0]), 5, v(t[0])); e("v_bfe_u32", v(t[1]), L, 5, 1); e("v_lshl_add_u32", v(t[0]), v(t[1]), 4, v(t[0]))
    e("v_bfe_u32", v(t[1]), L, 4, 1); e("v_lshl_add_u32", v(t[0]), v(t[1]), 3, v(t[0]))
    e("buffer_store_dwordx2", v(80, 2), v(t[0]), s(R_WS, 4), s(sSO), mods="offen sc1", tag="tab")
    for rr, src in enumerate((64, 68, 72)):
        b = 96 + 8 * rr
        for q in range(4): unpack(S, b + 2 * q, b + 2 * q + 1, src + q)
    acc = (82, 83, 84)
    for rr in range(3):
        b = 96 + 8 * rr
        e("v_add_f32", v(acc[rr]), v(b), v(b + 1))
        for q in range(2, 8): e("v_add_f32", v(acc[rr]), v(acc[rr]), v(b + q))
    for rr in range(3): allreduce64(S, acc[rr], 85 + rr, None)
    e("v_mov_b32", v(t[0]), 0); e("v_mov_b32", v(t[1]), hex(OOB)); e("v_cmp_eq_u32", "vcc", 0, L); e("v_cndmask_b32", v(t[0]), v(t[1]), v(t[0]), "vcc")
    e("s_lshl_b32", s(sT2), s(sR), 2); e("s_add_u32", s(sSO), "s86", s(sT2)); e("s_add_u32", s(sSO), s(sSO), 1024)
    e("buffer_store_dword", v(82), v(t[0]), s(R_WS, 4), s(sSO), mods="offen sc1", tag="tab")
    for rr in (1, 2):
        b = 96 + 8 * rr; m = acc[rr]
        e("v_mul_f32", v(m), f32(1.0 / 512), v(m))
        for q in range(8): e("v_sub_f32", v(b + q), v(b + q), v(m))
        e("v_mul_f32", v(87 + rr), v(b), v(b))
        for q in range(1, 8): e("v_fmac_f32", v(87 + rr), v(b + q), v(b + q))
    for rr in (1, 2): allreduce64(S, 87 + rr, 91 + rr, None)
    for rr in (1, 2):
        e("v_mov_b32", v(t[1]), f32(1e-5)); e("v_fmac_f32", v(t[1]), f32(1.0 / 512), v(87 + rr)); e("v_rsq_f32", v(87 + rr), v(t[1]))
    e("v_mov_b32", v(96), v(83)); e("v_mov_b32", v(97), v(88)); e("v_mov_b32", v(98), v(84)); e("v_mov_b32", v(99), v(89))
    e("s_lshl_b32", s(sT1), s(sI), 4); e("s_add_u32", s(sT1), s(sT1), s(sJ)); e("s_lshl_b32", s(sT1), s(sT1), 7); e("s_lshl_b32", s(sT2), s(sR), 4)
    e("s_add_u32", s(sT1), s(sT1), s(sT2)); e("s_add_u32", s(sSO), s(sT1), hex(WS_STAT))
    e("buffer_store_dwordx4", v(96, 4), v(t[0]), s(R_WS, 4), s(sSO), mods="offen sc1", tag="tab")
    a = 100
    e("v_lshlrev_b32", v(76), 16, v(76)); e("v_lshlrev_b32", v(77), 16, v(77)); e("v_lshlrev_b32", v(78), 16, v(78))
    e("v_mul_f32", v(78), f32(LOG2E), v(78)); e("v_exp_f32", v(78), v(78))
    e("v_cvt_pk_bf16_f32", v(78), v(78), v(78)); e("v_and_b32", v(78), "0xffff0000", v(78))
    e("v_mul_f32", v(a), v(78), v(76)); e("v_mul_f32", v(a + 1), v(78), v(77))
    e("v_mul_f32", v(a), f32(LOG2E), v(a)); e("v_mul_f32", v(a + 1), f32(1.0 / (2 * math.pi)), v(a + 1))
    e("v_exp_f32", v(a + 6), v(a)); e("v_cos_f32", v(a + 2), v(a + 1)); e("v_sin_f32", v(a + 3), v(a + 1))
    e("v_mul_f32", v(a + 2), v(a + 2), v(a + 6)); e("v_mul_f32", v(a + 3), v(a + 3), v(a + 6))
    e("v_add_f32", v(a + 6), -1.0, v(a + 2))
    e("v_mul_f32", v(a + 4), v(a + 6), v(76)); e("v_fmac_f32", v(a + 4), v(a + 3), v(77))
    e("v_mul_f32", v(a + 5), v(a + 3), v(76)); e("v_fma_f32", v(a + 5), "-" + v(a + 6), v(77), v(a + 5))
    e("v_mul_f32", v(a + 6), v(76), v(76)); e("v_fmac_f32", v(a + 6), v(77), v(77)); e("v_rcp_f32", v(a + 6), v(a + 6))
    e("v_add_f32", v(a + 6), v(a + 6), v(a + 6))
    e("v_mul_f32", v(a + 4), v(a + 4), v(a + 6)); e("v_mul_f32", v(a + 5), v(a + 5), v(a + 6))
    e("v_mov_b32", v(a + 6), 0); e("v_mov_b32", v(a + 7), 0)
    e("v_and_b32", v(t[2]), 31, L); e("v_lshlrev_b32", v(t[2]), 5, v(t[2])); e("v_add_u32", v(t[2]), hex(L_PT), v(t[2]))
    e("ds_write_b128", v(t[2]), v(a, 4)); e("ds_write_b128", v(t[2]), v(a + 4, 4), mods="offset:16")
    return S

def p0_table_loads(S, o):
    e = S.e; L = v(vLANE); t = vT
    poll(S, o, 27, 1, srdreg=R_DBG, byte=True)
    poll(S, o, 28, 1, srdreg=R_DBG, byte=True)
    poll(S, o, vPOLL, 1)
    e("s_lshl_b32", s(sT1), s(sJ), 15); e("s_add_u32", s(sSO), s(sT1), hex(WS_CSP)); e("s_lshl_b32", s(sT2), s(sR), 8); e("s_add_u32", s(sSO2), s(sSO), s(sT2))
    e("v_lshlrev_b32", v(t[0]), 2, L)
    for ip in range(16):
        e("buffer_load_dword", v(48 + ip), v(t[0]), s(R_WS, 4), s(sSO2), mods=f"offen offset:{(ip & 1) * 2048} sc1")
        if ip & 1 and ip < 15: e("s_add_u32", s(sSO2), s(sSO2), 4096)
    e("v_lshrrev_b32", v(t[1]), 2, L); e("v_lshlrev_b32", v(t[1]), 11, v(t[1])); e("v_and_b32", v(t[2]), 3, L); e("v_lshl_add_u32", v(t[1]), v(t[2]), 2, v(t[1]))
    e("buffer_load_dword", v(64), v(t[1]), s(R_WS, 4), s(sSO), mods="offen offset:1024 sc1")
    e("v_and_b32", v(t[2]), 31, L); e("s_lshl_b32", s(sT1), s(sR), 5); e("v_add_u32", v(t[2]), s(sT1), v(t[2]))
    e("v_lshrrev_b32", v(t[3]), 3, v(t[2])); e("v_lshlrev_b32", v(t[3]), 7, v(t[3])); e("v_and_b32", v(t[4]), 7, v(t[2])); e("v_lshl_add_u32", v(t[3]), v(t[4]), 3, v(t[3]))
    e("s_lshl_b32", s(sT1), s(sI), 11); e("s_add_u32", s(sSO), s(sT1), hex(WS_STAT))
    e("buffer_load_dwordx2", v(66, 2), v(t[3]), s(R_WS, 4), s(sSO), mods="offen sc1")
    e("v_lshlrev_b32", v(65), 2, v(t[2]))

def hilo_entry(S, src, d0, d1, tmp):
    e = S.e
    e("v_cvt_pk_bf16_f32", v(d1), v(src), 0)
    e("v_lshlrev_b32", v(tmp), 16, v(d1)); e("v_sub_f32", v(tmp), v(src), v(tmp))
    e("v_cvt_pk_bf16_f32", v(tmp), v(tmp), 0)
    e("v_lshl_or_b32", v(d0), v(tmp), 16, v(d1))

def p0_table_build(S):
    e = S.e; L = v(vLANE); t = vT
    for ip in range(1, 16): e("v_add_f32", v(48), v(48), v(48 + ip))
    hilo_entry(S, 48, 50, 51, 52)
    e("v_and_b32", v(t[0]), 3, L); e("v_bfe_u32", v(t[1]), L, 3, 1); e("v_lshl_add_u32", v(t[0]), v(t[1]), 2, v(t[0]))
    e("v_bfe_u32", v(t[1]), L, 2, 1); e("v_lshl_add_u32", v(t[0]), v(t[1]), 3, v(t[0])); e("v_lshlrev_b32", v(t[0]), 3, v(t[0]))
    e("v_lshrrev_b32", v(t[1]), 4, L); e("v_lshl_add_u32", v(t[0]), v(t[1]), 8, v(t[0]))
    e("s_lshr_b32", s(sT1), s(sR), 1); e("s_lshl_b32", s(sT1), s(sT1), 10); e("s_and_b32", s(sT2), s(sR), 1); e("s_lshl_b32", s(sT2), s(sT2), 7)
    e("s_add_u32", s(sT1), s(sT1), s(sT2)); e("s_add_u32", s(sT1), s(sT1), hex(L_CT)); e("v_add_u32", v(t[0]), s(sT1), v(t[0]))
    e("ds_write_b64", v(t[0]), v(50, 2))
    hilo_entry(S, 64, 52, 53, 54)
    e("v_lshlrev_b32", v(t[0]), 3, L); e("v_add_u32", v(t[0]), hex(L_CT + 8 * 256), v(t[0]))
    e("ds_write_b64", v(t[0]), v(52, 2))
    e("v_add_u32", v(65), hex(L_MM), v(65))
    e("ds_write_b32", v(65), v(66)); e("ds_write_b32", v(65), v(67), mods="offset:512")

def job1_step(S, sx, sw, q):
    e = S.e
    e("v_add_u32", v(vAXC[0]), hex(sx.pos * SLOT), v(vAX))
    for k in range(1, 4): e("v_xor_b32", v(vAXC[k]), 32 * k, v(vAXC[0]))
    for tt in range(2): e("v_add_u32", v(vAWC[tt]), hex(sw.pos * SLOT), v(vAW[tt]))
    for k in range(4): e("ds_read_b128", v(vX + 4 * (4 * q + k), 4), v(vAXC[k]))
    unit_mfmas(S, q, vACC1, first=(q == 0))

def wread(S, buf, tt, ks):
    for ee in range(2):
        S.e("ds_read_b64_tr_b16", v(vW + 8 * buf + 4 * tt + 2 * ee, 2), v(vAWC[tt]), mods=f"offset:{ks * 4096 + ee * 512}")

def unit_mfmas(S, q, acc, first, nslots=1):
    e = S.e
    for tt in range(2): wread(S, 0, tt, 0)
    for k in range(4):
        if k < 3:
            for tt in range(2): wread(S, (k + 1) & 1, tt, k + 1)
        ks = 4 * q + k
        for tt in range(2):
            a = acc + 16 * tt
            e("v_mfma_f32_32x32x16_bf16", v(a, 16), v(vW + 8 * (k & 1) + 4 * tt, 4), v(vX + 4 * ks, 4), 0 if (first and k == 0) else v(a, 16))

def mfrag_build(S, dst):
    e = S.e; L = v(vLANE); t = vT
    e("v_bfe_u32", v(t[0]), L, 2, 1); e("v_lshlrev_b32", v(t[0]), 4, v(t[0])); e("v_bfe_u32", v(t[1]), L, 3, 2); e("v_lshl_add_u32", v(t[0]), v(t[1]), 2, v(t[0]))
    e("v_and_b32", v(t[1]), 3, L); e("v_add_u32", v(t[0]), v(t[0]), v(t[1])); e("s_lshl_b32", s(sT1), s(sR), 5); e("v_add_u32", v(t[0]), s(sT1), v(t[0]))
    e("v_lshlrev_b32", v(t[0]), 2, v(t[0])); e("v_add_u32", v(t[0]), hex(L_MM), v(t[0]))
    e("ds_read_b32", v(t[1]), v(t[0])); e("ds_read_b32", v(t[2]), v(t[0]), mods="offset:512")
    e("v_mul_f32", v(vC1), f32(-LOG2E), v(t[2])); e("v_mul_f32", v(vR2), v(t[2]), v(t[2]))
    e("v_sub_f32", v(t[1]), 0, v(t[1]))
    e("v_cvt_pk_bf16_f32", v(dst), v(t[1]), v(t[1]))
    e("v_and_b32", v(t[3]), "0xffff0000", v(dst)); e("v_sub_f32", v(t[3]), v(t[1]), v(t[3]))
    e("v_cvt_pk_bf16_f32", v(dst + 1), v(t[3]), 0)
    e("v_cmp_gt_u32", "vcc", 32, L)
    e("v_cndmask_b32", v(dst), 0, v(dst), "vcc"); e("v_cndmask_b32", v(dst + 1), 0, v(dst + 1), "vcc")
    e("v_mov_b32", v(dst + 2), 0); e("v_mov_b32", v(dst + 3), 0)

vMF = 20
def correction(S, tile_idx_expr, acc, ffn, buf):
    e = S.e; L = v(vLANE)
    e("v_and_b32", v(vT[0]), 31, L); e("v_lshlrev_b32", v(vT[0]), 3, v(vT[0])); e("v_add_u32", v(vT[0]), s(tile_idx_expr), v(vT[0]))
    e("ds_read_b64", v(vW + 4 * buf, 2), v(vT[0]))
    if ffn: e("v_mfma_f32_32x32x16_bf16", v(acc, 16), v(vW + 4 * buf, 4), v(vMF, 4), v(acc, 16))
    else:   e("v_mfma_f32_32x32x16_bf16", v(acc, 16), v(vMF, 4), v(vW + 4 * buf, 4), v(acc, 16))

def ffn_epilogue(S, acc, kstep_sgpr, imm):
    e = S.e; t = vT
    for p in range(4):
        tt = [t[0], t[1]]; pp = [t[2], t[3]]
        for z in range(2): e("v_mul_f32", v(tt[z]), v(vC1), v(acc + 2 * p + z))
        for z in range(2): e("v_exp_f32", v(tt[z]), v(tt[z]))
        for z in range(2): e("v_mul_f32", v(pp[z]), v(acc + 2 * p + z), v(acc + 8 + 2 * p + z))
        for z in range(2): e("v_add_f32", v(tt[z]), 1.0, v(tt[z]))
        for z in range(2): e("v_rcp_f32", v(tt[z]), v(tt[z]))
        for z in range(2): e("v_mul_f32", v(pp[z]), v(pp[z]), v(vR2))
        for z in range(2): e("v_mul_f32", v(pp[z]), v(pp[z]), v(tt[z]))
        e("v_cvt_pk_bf16_f32", v(acc + p), v(pp[0]), v(pp[1]))
    e("buffer_store_dwordx4", v(acc, 4), v(vST), s(R_WS, 4), s(kstep_sgpr), mods=f"offen offset:{imm} sc1", tag="gu")

def job2_step(S, slots, hk):
    e = S.e; L = v(vLANE); t = vT
    e("s_mov_b32", s(sT2), hex(slots[0].pos * SLOT)); e("s_cmp_eq_u32", s(sC), 0); e("s_cselect_b32", s(sT1), s(sT2), hex(slots[1].pos * SLOT))
    e("v_and_b32", v(t[0]), 31, L); e("v_lshrrev_b32", v(t[1]), 5, L); e("v_and_b32", v(t[2]), 15, L); e("v_xor_b32", v(t[1]), v(t[1]), v(t[2]))
    e("v_lshlrev_b32", v(t[1]), 4, v(t[1])); e("v_lshl_add_u32", v(t[0]), v(t[0]), 9, v(t[1])); e("v_add_u32", v(vAXC[0]), s(sT1), v(t[0]))
    def rd(k):
        a = vAXC[1 + (k & 1)]
        e("v_xor_b32", v(a), 32 * k, v(vAXC[0]))
        e("ds_read_b128", v(vW + 4 * (k & 3), 4), v(a))
    rd(0); rd(1)
    for k in range(16):
        if k + 2 < 16: rd(k + 2)
        ks = 16 * hk + k
        e("v_mfma_f32_32x32x16_bf16", v(vACCS, 16), v(vX + 4 * ks, 4), v(vW + 4 * (k & 3), 4), 0 if ks == 0 else v(vACCS, 16))

def cpow(S, nreg, a2, th, dr, di, tmp):
    e = S.e
    e("v_mul_f32", v(tmp), v(nreg), v(a2)); e("v_exp_f32", v(tmp), v(tmp))
    e("v_mul_f32", v(di), v(nreg), v(th)); e("v_fract_f32", v(di), v(di))
    e("v_cos_f32", v(dr), v(di)); e("v_sin_f32", v(di), v(di))
    e("v_mul_f32", v(dr), v(dr), v(tmp)); e("v_mul_f32", v(di), v(di), v(tmp))

def cfma(S, dr, di, ar, ai, br, bi, cr, ci):
    e = S.e
    e("v_fma_f32", v(dr), v(ar), v(br), v(cr)); e("v_fma_f32", v(di), v(ar), v(bi), v(ci))
    e("v_fma_f32", v(dr), "-" + v(ai), v(bi), v(dr)); e("v_fma_f32", v(di), v(ai), v(br), v(di))

sA2, sTH, sLR, sLI, sCR, sCI = 96, 97, 98, 99, 100, 101
sRS = 104
sER, sEI = 112, 113
sXR, sXI = 114, 115
sPR, sPI = 116, 117
sMR, sMI = 118, 119
sU = list(range(120, 128))

def s_epilogue_1(S):
    e = S.e; L = v(vLANE); t = vT; R = vACCS; I = vACCS + 8
    e("v_and_b32", v(t[0]), 15, L); e("s_lshl_b32", s(sT1), s(sC), 4); e("v_add_u32", v(t[0]), s(sT1), v(t[0]))
    e("v_lshlrev_b32", v(t[0]), 5, v(t[0])); e("v_add_u32", v(t[0]), hex(L_PT), v(t[0]))
    e("ds_read_b128", v(sA2, 4), v(t[0])); e("ds_read_b128", v(sCR, 4), v(t[0]), mods="offset:16")
    e("v_lshrrev_b32", v(t[1]), 4, L); e("v_lshlrev_b32", v(t[1]), 5, v(t[1])); e("s_lshl_b32", s(sT1), s(sR), 7); e("s_add_u32", s(sT1), s(sT1), hex(L_RS))
    e("v_add_u32", v(t[1]), s(sT1), v(t[1]))
    e("ds_read_b128", v(sRS, 4), v(t[1])); e("ds_read_b128", v(sRS + 4, 4), v(t[1]), mods="offset:16")
    for p in range(8): e("v_permlane16_swap_b32", v(R + p), v(I + p))
    for p in range(8):
        a, b = sU[0], sU[1]
        e("v_mul_f32", v(a), v(sCR), v(R + p)); e("v_mul_f32", v(b), v(sCR), v(I + p))
        e("v_fma_f32", v(a), "-" + v(sCI), v(I + p), v(a)); e("v_fmac_f32", v(b), v(sCI), v(R + p))
        e("v_mul_f32", v(R + p), v(sRS + p), v(a)); e("v_mul_f32", v(I + p), v(sRS + p), v(b))
    e("v_mov_b32", v(sER), v(R)); e("v_mov_b32", v(sEI), v(I))
    for p in range(1, 8):
        a, b = sU[0], sU[1]
        e("v_fma_f32", v(a), v(sLR), v(sER), v(R + p)); e("v_fma_f32", v(b), v(sLR), v(sEI), v(I + p))
        e("v_fma_f32", v(a), "-" + v(sLI), v(sEI), v(a)); e("v_fma_f32", v(b), v(sLI), v(sER), v(b))
        e("v_mov_b32", v(sER), v(a)); e("v_mov_b32", v(sEI), v(b))
    e("v_mov_b32", v(sU[2]), f32(8.0)); cpow(S, sU[2], sA2, sTH, sMR, sMI, sU[3])
    ar, ai, br, bi = sU[0], sU[1], sU[2], sU[3]
    e("v_mov_b32", v(ar), v(sER)); e("v_mov_b32", v(br), v(sER)); e("v_mov_b32", v(ai), v(sEI)); e("v_mov_b32", v(bi), v(sEI))
    e("v_permlane16_swap_b32", v(ar), v(br)); e("v_permlane16_swap_b32", v(ai), v(bi))
    cfma(S, sPR, sPI, sMR, sMI, ar, ai, br, bi)
    e("v_bfe_u32", v(t[2]), L, 4, 1); e("v_cmp_eq_u32", "vcc", 1, v(t[2]))
    e("v_cndmask_b32", v(sXR), 0, v(ar), "vcc"); e("v_cndmask_b32", v(sXI), 0, v(ai), "vcc")
    cr, ci, dr, di = sU[4], sU[5], sU[6], sU[7]
    e("v_mov_b32", v(cr), v(sPR)); e("v_mov_b32", v(dr), v(sPR)); e("v_mov_b32", v(ci), v(sPI)); e("v_mov_b32", v(di), v(sPI))
    e("v_permlane32_swap_b32", v(cr), v(dr)); e("v_permlane32_swap_b32", v(ci), v(di))
    cfma(S, ar, ai, sMR, sMI, cr, ci, sXR, sXI)
    e("v_add_f32", v(br), v(cr), v(sXR)); e("v_add_f32", v(bi), v(ci), v(sXI))
    e("v_lshrrev_b32", v(t[2]), 4, L)
    e("v_cmp_eq_u32", "vcc", 2, v(t[2])); e("v_cndmask_b32", v(sXR), v(sXR), v(br), "vcc"); e("v_cndmask_b32", v(sXI), v(sXI), v(bi), "vcc")
    e("v_cmp_eq_u32", "vcc", 3, v(t[2])); e("v_cndmask_b32", v(sXR), v(sXR), v(ar), "vcc"); e("v_cndmask_b32", v(sXI), v(sXI), v(ai), "vcc")
    e("v_mov_b32", v(ar), f32(16.0)); cpow(S, ar, sA2, sTH, br, bi, ai)
    cfma(S, dr, di, br, bi, cr, ci, dr, di)
    e("v_and_b32", v(t[0]), 15, L); e("v_lshlrev_b32", v(t[0]), 5, v(t[0]))
    e("s_lshl_b32", s(sT1), s(sC), 9); e("s_lshl_b32", s(sT2), s(sR), 3); e("s_add_u32", s(sT1), s(sT1), s(sT2)); e("s_add_u32", s(sT1), s(sT1), hex(L_XW))
    e("v_add_u32", v(t[0]), s(sT1), v(t[0]))
    e("v_mov_b32", v(sPR), v(dr)); e("v_mov_b32", v(sPI), v(di))
    e("ds_write_b64", v(t[0]), v(sPR, 2))

sYR, sYI = 112, 113
def s_epilogue_2(S):
    e = S.e; L = v(vLANE); t = vT
    e("v_and_b32", v(t[0]), 15, L); e("v_lshlrev_b32", v(t[0]), 5, v(t[0]))
    e("s_lshl_b32", s(sT1), s(sC), 9); e("s_add_u32", s(sT1), s(sT1), hex(L_XW)); e("v_add_u32", v(t[0]), s(sT1), v(t[0]))
    w = 104
    e("ds_read_b128", v(w, 4), v(t[0])); e("ds_read_b128", v(w + 4, 4), v(t[0]), mods="offset:16")
    nr, ni, tm = sU[0], sU[1], sU[2]
    e("v_mov_b32", v(tm), f32(32.0)); cpow(S, tm, sA2, sTH, nr, ni, sU[3])
    for k in range(1, 4): cfma(S, w + 2 * k, w + 2 * k + 1, nr, ni, w + 2 * k - 2, w + 2 * k - 1, w + 2 * k, w + 2 * k + 1)
    e("v_mov_b32", v(sYR), 0); e("v_mov_b32", v(sYI), 0)
    for k in range(1, 4):
        e("s_cmp_eq_u32", s(sR), k); e("s_cselect_b64", s(sMA, 2), -1, 0)
        e("v_cndmask_b32", v(sYR), v(sYR), v(w + 2 * k - 2), s(sMA, 2)); e("v_cndmask_b32", v(sYI), v(sYI), v(w + 2 * k - 1), s(sMA, 2))
    e("s_lshl_b32", s(sT1), s(sJ), 12); e("s_lshl_b32", s(sT2), s(sI), 8); e("s_add_u32", s(sT1), s(sT1), s(sT2)); e("s_lshl_b32", s(sT2), s(sC), 7)
    e("s_add_u32", s(sT1), s(sT1), s(sT2)); e("s_add_u32", s(sT1), s(sT1), hex(WS_AGG)); e("s_cmp_eq_u32", s(sR), 0); e("s_cselect_b32", s(sSO), s(sT1), hex(OOB))
    e("v_lshlrev_b32", v(t[1]), 3, L); e("v_mov_b32", v(t[2]), hex(OOB)); e("v_cmp_gt_u32", "vcc", 16, L); e("v_cndmask_b32", v(t[1]), v(t[2]), v(t[1]), "vcc")
    e("v_add_u32", v(t[1]), s(sSO), v(t[1]))
    e("buffer_store_dwordx2", v(w + 6, 2), v(t[1]), s(R_WS, 4), 0, mods="offen sc1", tag="agg")

def p0_carry(S, o):
    e = S.e; L = v(vLANE); t = vT
    poll(S, o, vPOLL, 3)
    b = 48
    e("s_and_b32", s(sT3), s(sR), 1)
    e("v_and_b32", v(t[0]), 15, L); e("s_lshl_b32", s(sT1), s(sT3), 4); e("v_add_u32", v(t[0]), s(sT1), v(t[0]))
    e("v_lshlrev_b32", v(t[1]), 5, v(t[0])); e("v_add_u32", v(t[1]), hex(L_PT), v(t[1])); e("ds_read_b64", v(b, 2), v(t[1]))
    e("s_lshl_b32", s(sT1), s(sJ), 12); e("s_lshl_b32", s(sT2), s(sT3), 7); e("s_add_u32", s(sT1), s(sT1), s(sT2)); e("s_add_u32", s(sSO), s(sT1), hex(WS_AGG))
    e("v_lshrrev_b32", v(t[2]), 4, L); e("v_and_b32", v(t[3]), 15, L); e("v_lshlrev_b32", v(t[3]), 3, v(t[3])); e("v_lshl_add_u32", v(t[3]), v(t[2]), 8, v(t[3]))
    for m in range(4): e("buffer_load_dwordx2", v(b + 2 + 2 * m, 2), v(t[3]), s(R_WS, 4), s(sSO), mods=f"offen offset:{m * 1024} sc1")
    hr, hi_, wr, wi, n, tm = b + 10, b + 11, b + 12, b + 13, b + 14, b + 15
    e("v_mov_b32", v(hr), 0); e("v_mov_b32", v(hi_), 0)
    for m in range(4):
        e("s_sub_u32", s(sT1), s(sI), 1 + 4 * m); e("v_sub_u32", v(n), s(sT1), v(t[2]))
        e("v_cmp_le_i32", "vcc", 0, v(n)); e("v_max_i32", v(n), 0, v(n)); e("v_cvt_f32_i32", v(n), v(n)); e("v_mul_f32", v(n), f32(128.0), v(n))
        cpow(S, n, b, b + 1, wr, wi, tm)
        e("v_cndmask_b32", v(wr), 0, v(wr), "vcc"); e("v_cndmask_b32", v(wi), 0, v(wi), "vcc")
        e("v_cndmask_b32", v(b + 2 + 2 * m), 0, v(b + 2 + 2 * m), "vcc"); e("v_cndmask_b32", v(b + 3 + 2 * m), 0, v(b + 3 + 2 * m), "vcc")
        cfma(S, hr, hi_, wr, wi, b + 2 + 2 * m, b + 3 + 2 * m, hr, hi_)
    for x in (hr, hi_):
        e("v_mov_b32", v(tm), v(x)); e("v_permlane16_swap_b32", v(x), v(tm)); e("v_add_f32", v(x), v(x), v(tm))
        e("v_mov_b32", v(tm), v(x)); e("v_permlane32_swap_b32", v(x), v(tm)); e("v_add_f32", v(x), v(x), v(tm))
    e("v_lshlrev_b32", v(t[0]), 3, v(t[0])); e("v_add_u32", v(t[0]), hex(L_HW), v(t[0]))
    e("ds_write_b64", v(t[0]), v(hr, 2))

def s_epilogue_3(S):
    e = S.e; L = v(vLANE); t = vT; R = vACCS; I = vACCS + 8
    e("v_and_b32", v(t[0]), 15, L); e("s_lshl_b32", s(sT1), s(sC), 4); e("v_add_u32", v(t[0]), s(sT1), v(t[0])); e("v_lshlrev_b32", v(t[0]), 3, v(t[0]))
    e("v_add_u32", v(t[0]), hex(L_HW), v(t[0])); e("ds_read_b64", v(104, 2), v(t[0]))
    e("v_lshrrev_b32", v(t[1]), 4, L); e("v_lshlrev_b32", v(t[1]), 3, v(t[1])); e("v_cvt_f32_u32", v(sU[0]), v(t[1]))
    e("s_lshl_b32", s(sT1), s(sR), 5); e("v_add_u32", v(t[1]), s(sT1), v(t[1])); e("v_cvt_f32_u32", v(sU[1]), v(t[1]))
    cpow(S, sU[0], sA2, sTH, sU[2], sU[3], sU[4]); cfma(S, sXR, sXI, sU[2], sU[3], sYR, sYI, sXR, sXI)
    cpow(S, sU[1], sA2, sTH, sU[2], sU[3], sU[4]); cfma(S, sXR, sXI, sU[2], sU[3], 104, 105, sXR, sXI)
    pr, pi = sXR, sXI
    for p in range(8):
        cfma(S, R + p, I + p, sLR, sLI, pr, pi, R + p, I + p)
        pr, pi = R + p, I + p
    for p in range(4): e("v_cvt_pk_bf16_f32", v(104 + p), v(R + 2 * p), v(R + 2 * p + 1))
    for p in range(4): e("v_cvt_pk_bf16_f32", v(108 + p), "-" + v(I + 2 * p), "-" + v(I + 2 * p + 1))
    e("s_lshl_b32", s(sT1), s(sC), 2); e("s_add_u32", s(sT1), s(sT1), s(sR)); e("s_lshl_b32", s(sT1), s(sT1), 10); e("s_add_u32", s(sT1), s(sT1), hex(L_TB))
    e("v_and_b32", v(t[0]), 15, L); e("v_lshlrev_b32", v(t[0]), 6, v(t[0])); e("v_lshrrev_b32", v(t[1]), 4, L); e("v_lshl_add_u32", v(t[0]), v(t[1]), 4, v(t[0]))
    e("v_add_u32", v(t[0]), s(sT1), v(t[0]))
    e("v_lshrrev_b32", v(t[1]), 5, L); e("v_lshlrev_b32", v(t[1]), 9, v(t[1])); e("v_bfe_u32", v(t[2]), L, 2, 2); e("v_lshl_add_u32", v(t[1]), v(t[2]), 6, v(t[1]))
    e("v_and_b32", v(t[2]), 1, L); e("v_lshl_add_u32", v(t[1]), v(t[2]), 5, v(t[1])); e("v_bfe_u32", v(t[2]), L, 4, 1); e("v_lshl_add_u32", v(t[1]), v(t[2]), 4, v(t[1]))
    e("v_bfe_u32", v(t[2]), L, 1, 1); e("v_lshl_add_u32", v(t[1]), v(t[2]), 3, v(t[1])); e("v_add_u32", v(t[1]), s(sT1), v(t[1]))
    e("s_lshl_b32", s(sT1), s(sJ), 1); e("s_add_u32", s(sT1), s(sT1), s(sC)); e("s_lshr_b32", s(sT2), s(sT1), 2); e("s_lshl_b32", s(sT2), s(sT2), 3)
    e("s_and_b32", s(sT1), s(sT1), 3); e("s_add_u32", s(sT1), s(sT1), s(sT2)); e("s_add_u32", s(sT1), s(sT1), 64); e("s_lshl_b32", s(sT1), s(sT1), 10)
    e("s_mul_i32", s(sT2), s(sI), hex(4 * RG)); e("s_add_u32", s(sT1), s(sT1), s(sT2)); e("s_add_u32", s(sSO), s(sT1), hex(WS_AFR)); e("s_add_u32", s(sSO2), s(sSO), 4096)
    for comp in range(2):
        e("ds_write_b128", v(t[0]), v(104 + 4 * comp, 4))
        for ee in range(2): e("ds_read_b64_tr_b16", v(112 + 4 * comp + 2 * ee, 2), v(t[1]), mods=f"offset:{ee * 256}")
    for comp in range(2):
        e("buffer_store_dwordx4", v(112 + 4 * comp, 4), v(vST), s(R_WS, 4), s(sSO if comp == 0 else sSO2), mods="offen sc1", tag="h")

def gu_soffset(S, dst, kbase):
    e = S.e
    e("s_lshl_b32", s(sT1), s(sJ), 2); e("s_lshl_b32", s(sT2), s(sC), 1); e("s_add_u32", s(sT1), s(sT1), s(sT2)); e("s_add_u32", s(sT1), s(sT1), kbase)
    e("s_lshl_b32", s(sT1), s(sT1), 10); e("s_mul_i32", s(sT2), s(sI), hex(4 * RG)); e("s_add_u32", s(sT1), s(sT1), s(sT2)); e("s_add_u32", s(dst), s(sT1), hex(WS_AFR))

def ct_offset(S, dst, tile_base, tt):
    e = S.e
    if tile_base == 8:
        e("s_lshl_b32", s(dst), s(sC), 8); e("s_add_u32", s(dst), s(dst), hex(L_CT + 8 * 256))
    else:
        e("s_lshl_b32", s(dst), s(sC), 9); e("s_add_u32", s(dst), s(dst), hex(L_CT + (tile_base + tt) * 256))

vAD, vAY = 128, 144
vFA, vFB = 160, 176
vXV = 192
vPA, vPBD, vPBY = 2, 3, 4
vPAC, vPBC = 5, 6; vPBYC = [7, 8, 9, 10]
vDSK = 11

def p0_phase2_setup(S):
    e = S.e; L = v(vLANE); t = vT
    e("s_lshr_b32", s(sT3), s(sR), 1); e("s_and_b32", s(sT4), s(sR), 1)
    e("s_lshl_b32", s(sT1), s(sT3), 13); e("v_lshlrev_b32", v(vPA), 4, L); e("v_add_u32", v(vPA), s(sT1), v(vPA))
    e("v_lshrrev_b32", v(t[0]), 5, L); e("v_lshlrev_b32", v(t[0]), 10, v(t[0])); e("v_bfe_u32", v(t[1]), L, 2, 2); e("v_lshl_add_u32", v(t[0]), v(t[1]), 7, v(t[0]))
    e("v_bfe_u32", v(t[1]), L, 3, 1); e("v_xor_b32", v(t[1]), s(sT4), v(t[1])); e("v_lshl_add_u32", v(t[0]), v(t[1]), 6, v(t[0]))
    e("v_bfe_u32", v(t[1]), L, 4, 1); e("v_lshl_add_u32", v(t[0]), v(t[1]), 5, v(t[0])); e("v_and_b32", v(t[1]), 3, L); e("v_lshl_add_u32", v(vPBD), v(t[1]), 3, v(t[0]))
    e("v_and_b32", v(t[0]), 31, L); e("s_lshl_b32", s(sT1), s(sT4), 5); e("v_add_u32", v(t[0]), s(sT1), v(t[0])); e("v_lshlrev_b32", v(t[0]), 7, v(t[0]))
    e("v_bfe_u32", v(t[1]), L, 1, 3); e("v_lshrrev_b32", v(t[2]), 5, L); e("v_xor_b32", v(t[1]), v(t[1]), v(t[2])); e("v_lshl_add_u32", v(vPBY), v(t[1]), 4, v(t[0]))
    srd(S, R_OUT, P_OUT, 2048 * 2048)
    e("s_lshl_b32", s(sT1), s(sRB), 6); e("s_lshl_b32", s(sT2), s(sT3), 5); e("s_add_u32", s(sT1), s(sT1), s(sT2))
    e("v_lshrrev_b32", v(t[0]), 5, L); e("v_lshlrev_b32", v(t[0]), 4, v(t[0])); e("v_add_u32", v(t[0]), s(sT1), v(t[0]))
    e("s_lshl_b32", s(sT1), s(sCB), 6); e("s_lshl_b32", s(sT2), s(sT4), 5); e("s_add_u32", s(sT1), s(sT1), s(sT2))
    e("v_and_b32", v(t[1]), 31, L); e("v_add_u32", v(t[1]), s(sT1), v(t[1]))
    e("v_lshlrev_b32", v(t[2]), 10, v(t[0])); e("v_lshl_add_u32", v(t[2]), v(t[1]), 1, v(t[2]))
    e("v_lshlrev_b32", v(27), 11, v(t[0])); e("v_lshl_add_u32", v(27), v(t[1]), 2, v(27))
    e("v_lshlrev_b32", v(t[1]), 1, v(t[1])); e("global_load_ushort", v(vDSK), v(t[1]), s(P_DSK, 2))
    for p in range(16):
        if p % 4 == 0: e("s_mov_b32", s(sSO), (p // 4) * 4096)
        e("buffer_load_ushort", v(vXV + p), v(t[2]), s(R_X, 4), s(sSO), mods=f"offen offset:{(p % 4) * 1024}")

def p0_phase2_stats(S):
    e = S.e; L = v(vLANE); t = vT
    e("s_and_b32", s(sT1), s(sRB), 1); e("s_lshl_b32", s(sT1), s(sT1), 6); e("v_add_u32", v(t[0]), s(sT1), L)
    e("v_lshrrev_b32", v(t[1]), 3, v(t[0])); e("v_lshlrev_b32", v(t[1]), 7, v(t[1])); e("v_and_b32", v(t[2]), 7, v(t[0])); e("v_lshl_add_u32", v(t[1]), v(t[2]), 3, v(t[1]))
    e("s_lshl_b32", s(sT1), s(sI2), 11); e("s_add_u32", s(sSO), s(sT1), hex(WS_STAT))
    e("buffer_load_dwordx2", v(t[5], 2), v(t[1]), s(R_WS, 4), s(sSO), mods="offen sc1")
    e("v_mul_f32", v(t[5]), v(t[5]), v(t[6])); e("v_sub_f32", v(t[5]), 0, v(t[5]))
    e("v_lshlrev_b32", v(t[0]), 2, L); e("v_add_u32", v(t[0]), hex(L_MM), v(t[0]))
    e("ds_write_b32", v(t[0]), v(t[5])); e("ds_write_b32", v(t[0]), v(t[6]), mods="offset:512")

def p2_step(S, sa, sb, sg):
    e = S.e
    isy = 8 <= sg < 16
    acc = vAY if isy else vAD
    first = sg in (0, 8)
    e("v_add_u32", v(vPAC), hex(sa.pos * SLOT), v(vPA))
    if not isy: e("v_add_u32", v(vPBC), hex(sb.pos * SLOT), v(vPBD))
    else:
        e("v_add_u32", v(vPBYC[0]), hex(sb.pos * SLOT), v(vPBY))
        for k in range(1, 4): e("v_xor_b32", v(vPBYC[k]), 32 * k, v(vPBYC[0]))
    def rd(k):
        e("ds_read_b128", v(vFA + 4 * (k & 3), 4), v(vPAC), mods=f"offset:{k * 1024}")
        if not isy:
            for ee in range(2): e("ds_read_b64_tr_b16", v(vFB + 4 * (k & 3) + 2 * ee, 2), v(vPBC), mods=f"offset:{k * 2048 + ee * 512}")
        else:
            e("ds_read_b128", v(vFB + 4 * (k & 3), 4), v(vPBYC[k & 3]), mods=f"offset:{(k >> 2) * 8192}")
    rd(0); rd(1)
    for k in range(8):
        if k + 2 < 8: rd(k + 2)
        e("v_mfma_f32_32x32x16_bf16", v(acc, 16), v(vFA + 4 * (k & 3), 4), v(vFB + 4 * (k & 3), 4), 0 if (first and k == 0) else v(acc, 16))

def p0_final(S):
    e = S.e; L = v(vLANE); t = vT
    e("s_lshr_b32", s(sT3), s(sR), 1); e("s_lshl_b32", s(sT1), s(sT3), 7); e("v_lshrrev_b32", v(t[0]), 5, L); e("v_lshlrev_b32", v(t[0]), 6, v(t[0]))
    e("v_add_u32", v(t[0]), s(sT1), v(t[0])); e("v_add_u32", v(t[0]), hex(L_MM), v(t[0]))
    for q in range(4):
        e("ds_read_b128", v(224 + 4 * q, 4), v(t[0]), mods=f"offset:{16 * q}")
        e("ds_read_b128", v(208 + 4 * q, 4), v(t[0]), mods=f"offset:{512 + 16 * q}")
    e("v_lshlrev_b32", v(vDSK), 16, v(vDSK))
    for p in range(0, 16, 2):
        for z in range(2):
            q = p + z
            e("v_mul_f32", v(t[z]), f32(-LOG2E), v(vAD + q))
        for z in range(2): e("v_exp_f32", v(t[z]), v(t[z]))
        for z in range(2): e("v_lshlrev_b32", v(vXV + p + z), 16, v(vXV + p + z))
        for z in range(2): e("v_add_f32", v(t[z]), 1.0, v(t[z]))
        for z in range(2): e("v_rcp_f32", v(t[z]), v(t[z]))
        for z in range(2): e("v_fma_f32", v(t[2 + z]), v(vXV + p + z), v(208 + p + z), v(224 + p + z))
        for z in range(2): e("v_fma_f32", v(t[2 + z]), v(t[2 + z]), v(vDSK), v(vAY + p + z))
        for z in range(2): e("v_mul_f32", v(t[z]), v(t[z]), v(vAD + p + z))
        for z in range(2): e("v_fma_f32", v(vAD + p + z), v(t[2 + z]), v(t[z]), v(vXV + p + z))
        for z in range(2):
            q = p + z
            if q % 2 == 0: e("s_mov_b32", s(sSO), (q // 2) * 4096)
            e("buffer_store_dword", v(vAD + q), v(27), s(R_OUT, 4), s(sSO), mods=f"offen offset:{(q % 2) * 2048}")

def schedule_ring(slots, nsteps):
    free = list(range(NSLOT)); issue = {}; nxt = 0; n = 0
    def take(step):
        nonlocal nxt, n
        lst = []
        while nxt < len(slots) and free:
            sl = slots[nxt]
            if sl.gate == "p2" and step < gate_step: break
            sl.pos = free.pop(0); sl.tag = f"slot{n}"; n += 1; lst.append(sl); nxt += 1
        return lst
    gate_step = [x.step for x in slots if x.gate == "p2"][0] - 1
    issue[-1] = take(-1)
    for st in range(nsteps):
        for sl in slots:
            if sl.step == st - 1: free.append(sl.pos)
        issue[st] = take(st)
    assert nxt == len(slots), (nxt, len(slots))
    return issue

def body(o, c, heavy):
    slots, p2 = build_slots(heavy)
    nsteps = p2 + 22
    issue = schedule_ring(slots, nsteps)
    by_step = {}
    for sl in slots: by_step.setdefault(sl.step, []).append(sl)
    head = Stream(); tail = Stream()
    def begin_step(S, st):
        if c == 1:
            for sl in by_step.get(st, []):
                S.wait_vm(sl.tag)
        S.drain(vm=False, lgkm=True)
        S.e("s_barrier")
        if c == 1:
            for sl in issue[st]: dma_slot(S, sl)
    S = head
    if c == 1:
        for sl in issue[-1]: dma_slot(S, sl)
    stamp(S, 0, o, c)
    for q in range(8):
        if q == 2 and c == 0: S.wait_vm("tab")
        begin_step(S, q)
        if q == 0: stamp(S, 1, o, c)
        if q == 2 and c == 0: set_flag(S, 1)
        if q == 5 and c == 0: p0_table_loads(S, o)
        if q == 5 and c == 1: p1_phase2_voffsets(S)
        sx, sw = by_step[q]
        job1_step(S, sx, sw, q)
        if q == 6 and c == 0: p0_table_build(S)
    begin_step(S, 8)
    stamp(S, 2, o, c)
    mfrag_build(S, vMF)
    for tt in range(2):
        ct_offset(S, sT3, 0, tt); correction(S, sT3, vACC1 + 16 * tt, True, tt)
    job2_step(S, by_step[8], 0)
    gu_soffset(S, sSO2, 0)
    for tt in range(2): ffn_epilogue(S, vACC1 + 16 * tt, sSO2, 1024 * tt)
    begin_step(S, 9)
    job2_step(S, by_step[9], 1)
    ct_offset(S, sT3, 8, 0); correction(S, sT3, vACCS, False, 0)
    s_epilogue_1(S)
    S.wait_vm("gu")
    return head, (slots, p2, nsteps, issue, by_step, begin_step)

def body_tail(o, c, heavy, ctx):
    slots, p2, nsteps, issue, by_step, begin_step = ctx
    S = Stream()
    st = 10
    def misc_barrier():
        S.drain(vm=False, lgkm=True); S.e("s_barrier")
    if heavy:
        for q2 in range(4):
            begin_step(S, st + q2)
            if q2 == 0:
                stamp(S, 3, o, c)
                if c == 0: set_flag(S, 2)
                s_epilogue_2(S)
            if q2 == 1:
                if c == 0: set_flag(S, 3)
            for z in range(2):
                sw = by_step[st + q2][z]; q = 2 * q2 + z
                for tt in range(2): S.e("v_add_u32", v(vAWC[tt]), hex(sw.pos * SLOT), v(vAW[tt]))
                unit_mfmas(S, q, vACC3, first=(q == 0))
            if q2 == 0: S.wait_vm("agg")
        for tt in range(2):
            ct_offset(S, sT3, 4, tt); correction(S, sT3, vACC3 + 16 * tt, True, tt)
        gu_soffset(S, sSO2, 128)
        for tt in range(2): ffn_epilogue(S, vACC3 + 16 * tt, sSO2, 1024 * tt)
    else:
        misc_barrier()
        stamp(S, 3, o, c)
        if c == 0: set_flag(S, 2)
        s_epilogue_2(S)
        S.wait_vm("agg")
        misc_barrier()
        if c == 0: set_flag(S, 3)
    stamp(S, 4, o, c)
    if c == 0: p0_carry(S, o)
    misc_barrier()
    s_epilogue_3(S)
    S.wait_vm("h"); S.wait_vm("gu")
    misc_barrier()
    if c == 0: set_flag(S, 5)
    stamp(S, 5, o, c)
    if o.stop == "phase1":
        S.drain(); S.e("s_branch", "L_end"); return S
    if c == 0:
        p0_phase2_setup(S)
        poll(S, o, vPOLL2, 5)
        p0_phase2_stats(S)
    begin_step(S, p2 - 1)
    for sg in range(22):
        begin_step(S, p2 + sg)
        if sg == 0: stamp(S, 6, o, c)
        if c == 0:
            sb, sa = by_step[p2 + sg]
            p2_step(S, sa, sb, sg)
    stamp(S, 7, o, c)
    if c == 0:
        S.drain(vm=False, lgkm=True)
        p0_final(S)
    S.drain()
    stamp(S, 8, o, c)
    S.drain()
    S.e("s_branch", "L_end")
    return S

def generate(o):
    out = []
    out.append(f"; @launch grid=(256,1,1) block=(512,1,1) lds={LDS_TOTAL}")
    out.append('.amdgcn_target "amdgcn-amd-amdhsa--gfx950"')
    out += kernel_header(NAME)
    lines, st0 = finalize(common_prologue(o)); out += lines
    for c in (0, 1):
        if c == 1: out.append("L_P1:")
        st = st0.copy()
        pro = p0_prologue(o) if c == 0 else p1_prologue(o)
        lines, st = finalize(pro, st); out += lines
        headH, ctxH = body(o, c, True)
        headL, ctxL = body(o, c, False)
        th = "\n".join(finalize(headH, st.copy())[0]); tl = "\n".join(finalize(headL, st.copy())[0])
        if th == tl:
            lines, st2 = finalize(headH, st); out += lines
            out.append(f"    s_cmp_ge_u32 s{sJ}, 12"); out.append(f"    s_cbranch_scc1 L_light{c}")
            lines, _ = finalize(body_tail(o, c, True, ctxH), st2.copy()); out += lines
            out.append(f"L_light{c}:")
            lines, _ = finalize(body_tail(o, c, False, ctxL), st2.copy()); out += lines
        else:
            out.append(f"    s_cmp_ge_u32 s{sJ}, 12"); out.append(f"    s_cbranch_scc1 L_light{c}")
            lines, st2 = finalize(headH, st.copy()); out += lines
            lines, _ = finalize(body_tail(o, c, True, ctxH), st2); out += lines
            out.append(f"L_light{c}:")
            lines, st2 = finalize(headL, st.copy()); out += lines
            lines, _ = finalize(body_tail(o, c, False, ctxL), st2); out += lines
    out.append("L_end:"); out.append("    s_endpgm")
    out += kernel_descriptor(NAME)
    return "\n".join(out) + "\n"

if __name__ == "__main__":
    import argparse
    ap = argparse.ArgumentParser(); ap.add_argument("-o", default="recurrent_scan__ssm_conv_s5__swiglu_ffn__prompt.s")
    ap.add_argument("--stop"); ap.add_argument("--prof", action="store_true")
    a = ap.parse_args(); o = Opt(); o.stop = a.stop; o.prof = a.prof
    open(a.o, "w").write(generate(o))
    print("wrote", a.o)
```
